```python
import torch

def _softmax(x, axis=-1):
    return torch.softmax(x, dim=axis)
def _gelu(x):
    return torch.nn.functional.gelu(x, approximate="tanh")
def _silu(x):
    return torch.nn.functional.silu(x)
def _sigmoid(x):
    return torch.sigmoid(x)
def _layernorm(x, axis=-1, eps=1e-5):
    m = x.mean(dim=axis, keepdim=True)
    v = x.var(dim=axis, keepdim=True, unbiased=False)
    return (x - m) / torch.sqrt(v + eps)
def _scatter_add(tgt, idx, src, axis=0):
    return tgt.clone().index_add_(axis, idx, src)
def _segment_sum(src, seg, n):
    out = torch.zeros((n,) + src.shape[1:], dtype=src.dtype)
    return out.index_add_(0, seg, src)
def _pad(x, pw):
    flat = tuple(v for pair in reversed(pw) for v in pair)
    return torch.nn.functional.pad(x, flat)

kernel_name = 'sequential_preLN__ssm_conv_h3__geglu_ffn__prompt'

def setup_inputs():

    _w = (lambda a: (lambda t: t.to(torch.bfloat16) if t.is_floating_point() else t)(torch.as_tensor(a)))
    def _A_setup():
        B, S, D = 1, 2048, 448
        ks = 4
        return {
            "q": _w((lambda *s: torch.randn(*s, dtype=torch.bfloat16) * 0.05)(B, S, D)),
            "k": _w((lambda *s: torch.randn(*s, dtype=torch.bfloat16) * 0.4)(B, S, D)),
            "v": _w((lambda *s: torch.randn(*s, dtype=torch.bfloat16) * 0.4)(B, S, D)),
            "shift_k": _w((lambda *s: torch.randn(*s, dtype=torch.bfloat16) * 0.4)(D, ks) * 0.5),
            "ssm_k": _w((lambda *s: torch.randn(*s, dtype=torch.bfloat16) * 0.4)(D, S) * (1.0 / S ** 0.5)),
            "ssm_D": _w((lambda *s: torch.randn(*s, dtype=torch.bfloat16) * 0.4)(D)),
        }
    _A_in = _A_setup()

    def _B_setup():
        B, S, D, F = 1, 2048, 448, 1792
        return {
            "x": _w((lambda *s: torch.randn(*s, dtype=torch.bfloat16) * 0.05)(B, S, D)),
            "w_gate": _w((lambda *s: torch.randn(*s, dtype=torch.bfloat16) * 0.05)(D, F)),
            "w_up": _w((lambda *s: torch.randn(*s, dtype=torch.bfloat16) * 0.05)(D, F)),
            "w_down": _w((lambda *s: torch.randn(*s, dtype=torch.bfloat16) * 0.05)(F, D)),
        }
    _B_in = _B_setup()

    return {
        "A_q": _A_in["q"],
        "A_k": _A_in["k"],
        "A_v": _A_in["v"],
        "A_shift_k": _A_in["shift_k"],
        "A_ssm_k": _A_in["ssm_k"],
        "A_ssm_D": _A_in["ssm_D"],
        "B_x": _B_in["x"],
        "B_w_gate": _B_in["w_gate"],
        "B_w_up": _B_in["w_up"],
        "B_w_down": _B_in["w_down"],
    }

def reference(A_q, A_k, A_v, A_shift_k, A_ssm_k, A_ssm_D, B_x, B_w_gate, B_w_up, B_w_down):
    def _A_ref(q, k, v, shift_k, ssm_k, ssm_D):
        B, S, D = q.shape
        ks = shift_k.shape[-1]
        k_pad = _pad(k, ((0, 0), (ks - 1, 0), (0, 0)))
        k_shift = torch.zeros_like(k)
        for t in range(ks):
            k_shift = k_shift + k_pad[:, t:t + S, :] * shift_k[:, ks - 1 - t][None, None, :]
        kv = k_shift * v
        L = 2 * S
        kv_pad = _pad(kv, ((0, 0), (0, S), (0, 0)))
        kf_pad = _pad(ssm_k, ((0, 0), (0, S)))
        kv_f = (lambda x, axes=(-2,-1): torch.fft.rfft2(x.float(), dim=axes))(kv_pad[:, None, :, :], axes=(1, 2))
        kf_f = (lambda x, axes=(-2,-1): torch.fft.rfft2(x.float(), dim=axes))(kf_pad[:, None, :], axes=(1, 2))
        kf_f = (lambda x, *d: x.permute(*d))(kf_f, 1, 2, 0)
        y_f = kv_f * kf_f[None, :, :, :]
        y = (lambda x, s, axes=(-2,-1): torch.fft.irfft2(x, s=s, dim=axes).to(torch.bfloat16))(y_f, (1, L), axes=(1, 2))[:, 0, :S, :]
        y = y + kv * ssm_D[None, None, :]
        return q * y

    def _B_ref(x, w_gate, w_up, w_down):
        return (_gelu(x @ w_gate) * (x @ w_up)) @ w_down

    x = A_q
    h = x + _A_ref(_layernorm(x, axis=-1), A_k, A_v, A_shift_k, A_ssm_k, A_ssm_D)
    h2 = h + _B_ref(_layernorm(h, axis=-1), B_w_gate, B_w_up, B_w_down)
    return h2
```

```python
import re

TRANS = ("v_exp_f32", "v_log_f32", "v_rcp_f32", "v_rsq_f32", "v_sqrt_f32", "v_sin_f32", "v_cos_f32",
         "v_rcp_iflag_f32")
_REG = re.compile(r"^(-?)(?:abs\()?([vsa])(?:(\d+)|\[(\d+):(\d+)\])\)?$")


def regs_of(tok):
    tok = tok.strip()
    if tok in ("vcc",):
        return {("s", "vcc")}
    if tok in ("vcc_lo", "vcc_hi"):
        return {("s", "vcc")}
    if tok == "m0":
        return {("s", "m0")}
    if tok in ("exec", "exec_lo", "exec_hi"):
        return {("s", "exec")}
    m = _REG.match(tok)
    if not m:
        return set()
    k = m.group(2)
    if m.group(3) is not None:
        return {(k, int(m.group(3)))}
    return {(k, i) for i in range(int(m.group(4)), int(m.group(5)) + 1)}


class Ins:
    def __init__(self, text):
        self.text = text
        t = text.split(";")[0].strip()
        parts = t.split(None, 1)
        self.op = parts[0]
        rest = parts[1] if len(parts) > 1 else ""
        ops, depth, cur = [], 0, ""
        for ch in rest:
            if ch in "[(":
                depth += 1
            if ch in "])":
                depth -= 1
            if ch == "," and depth == 0:
                ops.append(cur.strip())
                cur = ""
            else:
                cur += ch
        if cur.strip():
            ops.append(cur.strip())
        self.mods = ""
        if ops:
            sp = ops[-1].split(None, 1)
            ops[-1] = sp[0]
            self.mods = sp[1] if len(sp) > 1 else ""
        self.ops = ops
        op = self.op
        self.is_mfma = op.startswith("v_mfma")
        self.is_valu = op.startswith("v_") and not self.is_mfma
        self.is_trans = any(op.startswith(x) for x in TRANS)
        self.is_dot = op.startswith("v_dot")
        self.is_ds = op.startswith("ds_")
        self.is_vmem = op.startswith(("buffer_", "global_", "flat_"))
        self.is_salu = op.startswith("s_")
        self.is_dpp = "_dpp" in op or "quad_perm" in self.mods or "row_" in self.mods
        self.is_perml = op.startswith("v_permlane")
        self.is_ldsdma = self.is_vmem and (" lds" in " " + self.mods or "_lds_" in op)
        R = [regs_of(o) for o in ops]
        self.wr, self.rd = set(), set()
        self.srcC = set()
        self.srcAB = set()
        self.store_wide = set()
        if self.is_mfma:
            self.wr = R[0]
            self.srcAB = R[1] | R[2]
            self.srcC = R[3]
            self.rd = self.srcAB | self.srcC
            self.passes = 8 if "32x32x16" in op else 4
            assert "32x32x16" in op or "16x16x32" in op
        elif self.is_valu:
            if self.is_perml and "swap" in op:
                self.wr = R[0] | R[1]
                self.rd = R[0] | R[1]
            else:
                self.wr = set(R[0])
                for r in R[1:]:
                    self.rd |= r
                if op.startswith(("v_fmac", "v_dot2c", "v_pk_fmac")) or self.is_dpp or "sdwa" in op or op.startswith("v_writelane"):
                    self.rd |= R[0]
                if op.startswith(("v_add_co", "v_sub_co", "v_addc_co", "v_subb_co", "v_subrev_co")):
                    self.wr |= R[1]
                if op.startswith("v_cndmask") and len(ops) == 3:
                    self.rd |= {("s", "vcc")}
        elif self.is_ds:
            if op.startswith(("ds_read", "ds_bpermute", "ds_permute", "ds_swizzle")):
                self.wr = R[0]
                for r in R[1:]:
                    self.rd |= r
            else:
                for r in R:
                    self.rd |= r
        elif self.is_vmem:
            if self.is_ldsdma:
                for r in R:
                    self.rd |= r
                self.rd |= {("s", "m0")}
            elif "_load" in op:
                self.wr = R[0]
                for r in R[1:]:
                    self.rd |= r
            else:
                for r in R:
                    self.rd |= r
                if op.endswith(("x3", "x4")):
                    self.store_wide = R[0] if op.startswith("buffer_") else R[1]
                if "atomic" in op and "sc0" in self.mods:
                    self.wr = R[0]
        elif self.is_salu:
            if op.startswith(("s_cmp", "s_cbranch", "s_branch", "s_waitcnt", "s_barrier", "s_nop", "s_endpgm",
                              "s_setprio", "s_sleep", "s_bitcmp")):
                for r in R:
                    self.rd |= r
            else:
                if R:
                    self.wr = set(R[0])
                for r in R[1:]:
                    self.rd |= r
                if "saveexec" in op:
                    self.wr |= {("s", "exec")}

    def states(self):
        if self.op == "s_nop":
            return int(self.ops[0], 0) + 1
        return 1


def vg(s):
    return {r for r in s if r[0] in "va"}


def sg(s):
    return {r for r in s if r[0] == "s"}


def need(p, c):
    n = 0
    if p.is_valu:
        w = vg(p.wr)
        if c.is_mfma and w & c.rd:
            n = max(n, 2 if not p.is_dot else 3)
        if c.is_valu:
            if p.is_trans and not c.is_trans and w & c.rd:
                n = max(n, 1)
            if c.op.startswith(("v_readfirstlane", "v_readlane")) and w & c.rd:
                n = max(n, 1)
            if c.is_dpp and w & c.rd:
                n = max(n, 2)
            if c.is_perml and w & c.rd:
                n = max(n, 2)
            if p.is_dot:
                if c.op == p.op:
                    ab = set()
                    for o in c.ops[1:3]:
                        ab |= regs_of(o)
                    if w & ab:
                        n = max(n, 3)
                elif w & (c.rd | c.wr):
                    n = max(n, 3)
            if "sdwa" in p.op and w & (c.rd | c.wr):
                n = max(n, 1)
        if p.is_dot and (c.is_ds or c.is_vmem) and w & c.rd:
            n = max(n, 3)
        sw = sg(p.wr)
        if sw:
            if c.is_vmem and sw & c.rd:
                n = max(n, 5)
            if c.is_valu and sw & c.rd:
                n = max(n, 4 if c.op.startswith(("v_readlane", "v_writelane")) else 2)
            if c.is_salu and sw & c.rd:
                n = max(n, 1)
    if p.is_mfma:
        big = p.passes == 8
        if c.is_mfma:
            if p.wr & c.srcAB:
                n = max(n, 12 if big else 8)
            if p.wr & c.srcC and not (p.wr == c.srcC and p.passes == c.passes):
                n = max(n, 10 if big else 6)
            if p.wr & c.wr and not (p.wr & c.srcC):
                n = max(n, 12 if big else 8)
        elif c.is_valu:
            if p.wr & (c.rd | c.wr):
                n = max(n, 12 if big else 8)
            if p.srcC & c.wr:
                n = max(n, 7 if big else 3)
        elif c.is_ds or c.is_vmem:
            if p.wr & (c.rd | c.wr):
                n = max(n, 12 if big else 8)
    if p.store_wide:
        if p.store_wide & c.wr:
            n = max(n, 2)
    if p.is_salu and ("s", "m0") in p.wr and c.is_ldsdma:
        n = max(n, 1)
    return n


class Asm:
    def __init__(self):
        self.items = []

    def __call__(self, text):
        for line in text.split("\n"):
            s = line.strip()
            if not s:
                continue
            if s.startswith((";", ".")) or s.split(";")[0].strip().endswith(":"):
                self.items.append(s)
            else:
                self.items.append(Ins(s))

    def raw(self, s):
        self.items.append(s)

    def finalize(self):
        out = []
        hist = []
        npad = 0
        for it in self.items:
            if isinstance(it, str):
                out.append(it if it.startswith((".", ";")) and not it.endswith(":") else it)
                continue
            req = 0
            dist = 0
            for p in reversed(hist):
                r = need(p, it) - dist
                if r > req:
                    req = r
                dist += p.states()
                if dist > 20:
                    break
            while req > 0:
                k = min(req, 16)
                nop = Ins("s_nop %d" % (k - 1))
                out.append("    " + nop.text + "   ; auto")
                hist.append(nop)
                req -= k
                npad += 1
            out.append("    " + it.text)
            hist.append(it)
            if it.op in ("s_endpgm",):
                hist = []
            if len(hist) > 40:
                hist = hist[-40:]
        return "\n".join(out) + "\n", npad
```

```python
import sys, math
from asmlib import Asm

NAME = "sequential_preLN__ssm_conv_h3__geglu_ffn__prompt"
S, D, F = 2048, 448, 1792
KVT = 0x0
XT = 0x1C0000
HT = 0x380000
WGU = 0x540000
WD = 0x850000
AF = 0x9D8000
ST1 = 0x10D8000
CS = 0x10DC000
WS_SIZE = 0x10E0000
IN_BYTES = S * D * 2
W_BYTES = D * F * 2


def srd(a, d, base, nbytes):
    a(f"s_mov_b32 s{d}, s{base}")
    a(f"s_mov_b32 s{d+1}, s{base+1}")
    a(f"s_mov_b32 s{d+2}, {hex(nbytes)}")
    a(f"s_mov_b32 s{d+3}, 0x20000")


def fbits(x):
    import struct
    return hex(struct.unpack("<I", struct.pack("<f", x))[0])


def round_bf16(a, v):
    a(f"v_cvt_pk_bf16_f32 v{v}, v{v}, v{v}")
    a(f"v_and_b32 v{v}, 0xffff0000, v{v}")


def header(a, name):
    a.raw(f".globl {name}")
    a.raw(".p2align 8")
    a.raw(f".type {name},@function")
    a.raw(f"{name}:")


def desc(name, vgpr, accum, sgpr=96):
    return f""".p2align 6
.amdhsa_kernel {name}
  .amdhsa_next_free_vgpr {vgpr}
  .amdhsa_next_free_sgpr {sgpr}
  .amdhsa_accum_offset {accum}
  .amdhsa_group_segment_fixed_size 0
  .amdhsa_kernarg_size 104
  .amdhsa_user_sgpr_count 2
  .amdhsa_user_sgpr_kernarg_segment_ptr 1
  .amdhsa_system_sgpr_workgroup_id_x 1
.end_amdhsa_kernel
"""


P_W0, P_T0, P_S0, P_END = 0, 88, 344, 472


def gen_prep(a):
    header(a, "prep_kernel")
    a(f"""
    s_cmp_ge_u32 s2, {P_END}
    s_cbranch_scc1 Lp_end
    s_load_dwordx4 s[4:7], s[0:1], 0
    s_load_dwordx4 s[8:11], s[0:1], 16
    s_load_dwordx4 s[12:15], s[0:1], 56
    s_load_dwordx2 s[16:17], s[0:1], 72
    s_load_dwordx2 s[18:19], s[0:1], 96
    v_and_b32 v1, 63, v0
    v_lshrrev_b32 v2, 6, v0
    s_mov_b32 s46, 0x05040100
    s_mov_b32 s47, 0x07060302
    s_cmp_lt_u32 s2, {P_T0}
    s_cbranch_scc1 Lp_wjob
    s_cmp_ge_u32 s2, {P_S0}
    s_cbranch_scc1 Lp_stats
    """)
    a(f"""
    s_sub_u32 s3, s2, {P_T0}
    s_and_b32 s40, s3, 7
    s_lshr_b32 s41, s3, 3
    v_lshrrev_b32 v3, 3, v1
    v_and_b32 v4, 7, v1
    s_mul_i32 s42, s40, 56
    v_mul_u32_u24 v5, 14, v2
    v_lshl_add_u32 v5, v3, 1, v5
    v_add_u32 v5, s42, v5
    s_lshl_b32 s43, s41, 6
    v_lshl_add_u32 v6, v4, 3, s43
    v_mul_u32_u24 v7, 896, v6
    v_lshl_add_u32 v7, v5, 1, v7
    v_subrev_u32 v8, 2688, v7
    v_lshlrev_b32 v9, 3, v5
    s_mov_b32 s48, 3584
    v_cmp_gt_u32 vcc, 7, v3
    s_and_saveexec_b64 s[44:45], vcc
    s_waitcnt lgkmcnt(0)
    """)
    srd(a, 28, 6, IN_BYTES)
    srd(a, 36, 10, D * 8)
    srd(a, 32, 8, IN_BYTES)
    srd(a, 24, 4, IN_BYTES)
    srd(a, 20, 18, WS_SIZE)
    for r in range(3):
        a(f"buffer_load_dword v{10+r}, v8, s[28:31], 0 offen offset:{896*r}")
    def rows(dst, sr):
        for r in range(8):
            so = "0" if r < 4 else "s48"
            a(f"buffer_load_dword v{dst+r}, v7, s[{sr}:{sr+3}], {so} offen offset:{896*(r&3)}")
    rows(13, 28)
    a("buffer_load_dwordx4 v[40:43], v9, s[36:39], 0 offen")
    rows(21, 32)
    rows(29, 24)
    a(f"""
    v_lshlrev_b32 v44, 12, v5
    v_lshl_add_u32 v45, v6, 1, v44
    v_lshlrev_b32 v46, 1, v6
    v_sub_u32 v46, 4080, v46
    v_add_u32 v46, v44, v46
    s_mov_b32 s50, {hex(KVT)}
    s_mov_b32 s51, {hex(KVT+4096)}
    s_mov_b32 s52, {hex(XT)}
    s_mov_b32 s53, {hex(XT+4096)}
    s_waitcnt vmcnt(16)
    """)
    for r in range(11):
        a(f"v_lshlrev_b32 v{50+2*r}, 16, v{10+r}")
        a(f"v_and_b32 v{51+2*r}, 0xffff0000, v{10+r}")
    a("""
    v_lshlrev_b32 v72, 16, v40
    v_lshlrev_b32 v73, 16, v42
    v_and_b32 v74, 0xffff0000, v40
    v_and_b32 v75, 0xffff0000, v42
    v_lshlrev_b32 v76, 16, v41
    v_lshlrev_b32 v77, 16, v43
    v_and_b32 v78, 0xffff0000, v41
    v_and_b32 v79, 0xffff0000, v43
    """)
    K = lambda r: f"v[{50+2*r}:{51+2*r}]"
    W = lambda t: f"v[{72+2*t}:{73+2*t}]"
    A = lambda r: f"v[{80+2*r}:{81+2*r}]"
    for r in range(8):
        a(f"v_pk_mul_f32 {A(r)}, {K(r)}, {W(3)}")
    for t in range(1, 4):
        for r in range(8):
            a(f"v_pk_fma_f32 {A(r)}, {K(r+t)}, {W(3-t)}, {A(r)}")
    a("s_waitcnt vmcnt(8)")
    for r in range(8):
        a(f"v_lshlrev_b32 v{50+2*r}, 16, v{21+r}")
        a(f"v_and_b32 v{51+2*r}, 0xffff0000, v{21+r}")
    for r in range(8):
        a(f"v_pk_mul_f32 {A(r)}, {A(r)}, {K(r)}")
    for c in range(2):
        for i in range(4):
            a(f"v_cvt_pk_bf16_f32 v{96+4*c+i}, v{80+2*(7-2*i)+c}, v{80+2*(6-2*i)+c}")
    a("buffer_store_dwordx4 v[96:99], v46, s[20:23], s50 offen")
    a("buffer_store_dwordx4 v[100:103], v46, s[20:23], s51 offen")
    a("s_waitcnt vmcnt(2)")
    for c in range(2):
        for i in range(4):
            a(f"v_perm_b32 v{104+4*c+i}, v{29+2*i+1}, v{29+2*i}, s{46+c}")
    a("buffer_store_dwordx4 v[104:107], v45, s[20:23], s52 offen")
    a("buffer_store_dwordx4 v[108:111], v45, s[20:23], s53 offen")
    a("s_endpgm")

    a("Lp_stats:")
    a(f"""
    s_sub_u32 s3, s2, {P_S0}
    s_lshl_b32 s3, s3, 4
    v_lshrrev_b32 v3, 4, v0
    v_add_u32 v3, s3, v3                    ; row
    v_and_b32 v4, 15, v0
    v_mul_u32_u24 v5, 896, v3
    v_lshl_add_u32 v5, v4, 3, v5
    s_waitcnt lgkmcnt(0)
    """)
    srd(a, 24, 4, IN_BYTES)
    srd(a, 20, 18, WS_SIZE)
    for i in range(7):
        a(f"buffer_load_dwordx2 v[{10+2*i}:{11+2*i}], v5, s[24:27], 0 offen offset:{128*i}")
    a(f"v_lshlrev_b32 v6, 2, v3")
    a(f"s_mov_b32 s50, {hex(ST1)}")
    a(f"s_mov_b32 s51, {hex(ST1+8192)}")
    a("s_waitcnt vmcnt(0)")
    for i in range(14):
        a(f"v_lshlrev_b32 v{30+2*i}, 16, v{10+i}")
        a(f"v_and_b32 v{31+2*i}, 0xffff0000, v{10+i}")
    P = lambda i: f"v[{30+2*i}:{31+2*i}]"
    a(f"v_pk_add_f32 v[60:61], {P(0)}, {P(1)}")
    a(f"v_pk_add_f32 v[62:63], {P(2)}, {P(3)}")
    for i in range(4, 14, 2):
        a(f"v_pk_add_f32 v[60:61], v[60:61], {P(i)}")
        a(f"v_pk_add_f32 v[62:63], v[62:63], {P(i+1)}")
    a("v_pk_add_f32 v[60:61], v[60:61], v[62:63]")
    a("v_add_f32 v60, v60, v61")
    def red16(v):
        for m in ("quad_perm:[1,0,3,2]", "quad_perm:[2,3,0,1]", "row_half_mirror", "row_mirror"):
            a(f"v_add_f32_dpp v{v}, v{v}, v{v} {m} row_mask:0xf bank_mask:0xf")
    red16(60)
    a(f"v_mul_f32 v60, {fbits(1.0/448)}, v60")
    for i in range(14):
        a(f"v_pk_add_f32 {P(i)}, {P(i)}, v[60:61] op_sel_hi:[1,0] neg_lo:[0,1] neg_hi:[0,1]")
    a(f"v_pk_mul_f32 v[62:63], {P(0)}, {P(0)}")
    a(f"v_pk_mul_f32 v[64:65], {P(1)}, {P(1)}")
    for i in range(2, 14, 2):
        a(f"v_pk_fma_f32 v[62:63], {P(i)}, {P(i)}, v[62:63]")
        a(f"v_pk_fma_f32 v[64:65], {P(i+1)}, {P(i+1)}, v[64:65]")
    a("v_pk_add_f32 v[62:63], v[62:63], v[64:65]")
    a("v_add_f32 v62, v62, v63")
    red16(62)
    a(f"v_mul_f32 v62, {fbits(1.0/448)}, v62")
    round_bf16(a, 60)
    round_bf16(a, 62)
    a(f"v_add_f32 v62, {fbits(1e-5)}, v62")
    round_bf16(a, 62)
    a("v_sqrt_f32 v62, v62")
    round_bf16(a, 62)
    a("v_rcp_f32 v62, v62")
    a("v_cmp_eq_u32 vcc, 0, v4")
    a("s_and_saveexec_b64 s[44:45], vcc")
    a("buffer_store_dword v60, v6, s[20:23], s50 offen")
    a("buffer_store_dword v62, v6, s[20:23], s51 offen")
    a("s_endpgm")

    a("Lp_wjob:")
    a(f"""
    s_cmp_ge_u32 s2, 84
    s_cbranch_scc1 Lp_end
    v_and_b32 v3, 31, v1                    ; p
    v_lshrrev_b32 v4, 5, v0                 ; og
    v_lshrrev_b32 v11, 5, v1                ; og&1
    s_waitcnt lgkmcnt(0)
    """)
    srd(a, 20, 18, WS_SIZE)
    a(f"""
    s_mov_b32 s26, {hex(W_BYTES)}
    s_mov_b32 s27, 0x20000
    s_cmp_ge_u32 s2, 56
    s_cbranch_scc1 Lp_wd
    ; gate/up
    s_and_b32 s40, s2, 1                    ; matrix
    s_lshr_b32 s41, s2, 1                   ; cb
    s_cmp_eq_u32 s40, 0
    s_cselect_b32 s24, s12, s14
    s_cselect_b32 s25, s13, s15
    s_mov_b32 s42, 3584                     ; pitch
    s_lshl_b32 s43, s41, 7
    v_lshrrev_b32 v5, 3, v3
    s_lshl_b32 s3, s41, 2
    v_add_u32 v5, s3, v5                    ; sub
    v_mul_u32_u24 v6, 28, v5
    v_add_u32 v6, v6, v2
    v_lshlrev_b32 v6, 10, v6
    v_and_b32 v7, 1, v3                     ; c bit1
    v_lshlrev_b32 v7, 1, v7
    v_and_b32 v8, 2, v3
    v_lshl_add_u32 v7, v8, 2, v7
    v_and_b32 v8, 4, v3
    v_add_u32 v7, v7, v8
    s_lshl_b32 s3, s40, 4
    v_add_u32 v7, s3, v7
    v_lshl_add_u32 v7, v11, 5, v7
    v_lshl_add_u32 v6, v7, 4, v6
    s_mov_b32 s49, {hex(WGU)}
    s_branch Lp_wgo
    Lp_wd:
    s_sub_u32 s3, s2, 56
    s_mul_i32 s40, s3, 37
    s_lshr_b32 s40, s40, 8                  ; kq = j/7
    s_mul_i32 s41, s40, 7
    s_sub_u32 s41, s3, s41                  ; cb = j%7
    s_mov_b32 s24, s16
    s_mov_b32 s25, s17
    s_mov_b32 s42, 896
    s_mul_i32 s43, s40, {448*896}
    s_lshl_b32 s3, s41, 7
    s_add_u32 s43, s43, s3
    v_lshrrev_b32 v5, 4, v3
    s_lshl_b32 s3, s41, 1
    v_add_u32 v5, s3, v5
    v_mul_u32_u24 v6, 112, v5
    s_mul_i32 s3, s40, 28
    v_add_u32 v6, s3, v6
    v_add_u32 v6, v6, v2
    v_lshlrev_b32 v6, 10, v6
    v_and_b32 v7, 1, v3
    v_lshlrev_b32 v7, 1, v7                 ; r1
    v_and_b32 v8, 6, v3
    v_lshl_add_u32 v7, v8, 2, v7
    v_and_b32 v8, 8, v3
    v_lshrrev_b32 v8, 1, v8
    v_add_u32 v7, v7, v8
    v_lshl_add_u32 v7, v11, 5, v7
    v_lshl_add_u32 v6, v7, 4, v6
    s_mov_b32 s49, {hex(WD)}
    Lp_wgo:
    s_lshl_b32 s3, s42, 3
    v_mul_lo_u32 v9, s3, v4
    v_lshl_add_u32 v9, v3, 2, v9
    s_mul_i32 s44, s42, 57
    """)
    for i in range(7):
        for e in range(8):
            a(f"buffer_load_dword v{16+8*i+e}, v9, s[24:27], s43 offen")
            if not (i == 6 and e == 7):
                a(f"s_add_u32 s43, s43, s{42 if e < 7 else 44}")
    a("v_mov_b32 v12, 0")
    a("v_mov_b32 v13, 0")
    a("s_mov_b32 s45, 0x3f803f80")
    for i in range(7):
        a(f"s_waitcnt vmcnt({48-8*i+2*i})")
        b = 72 + 8 * (i & 1) * 1
        b = 72 + 8 * i
        for c in range(2):
            for e in range(4):
                a(f"v_perm_b32 v{b+4*c+e}, v{16+8*i+2*e+1}, v{16+8*i+2*e}, s{46+c}")
        a(f"buffer_store_dwordx4 v[{b}:{b+3}], v6, s[20:23], s49 offen")
        a(f"buffer_store_dwordx4 v[{b+4}:{b+7}], v6, s[20:23], s49 offen offset:16")
        if i < 6:
            a("s_add_u32 s49, s49, 4096")
        for e in range(4):
            a(f"v_dot2c_f32_bf16 v12, s45, v{b+e}")
            a(f"v_dot2c_f32_bf16 v13, s45, v{b+4+e}")
    a(f"""
    s_cmp_ge_u32 s2, 56
    s_cbranch_scc1 Lp_end
    v_lshlrev_b32 v14, 3, v0                ; og*256 + p*8
    ds_write_b64 v14, v[12:13]
    s_waitcnt lgkmcnt(0)
    s_barrier
    v_cmp_gt_u32 vcc, 64, v0
    s_and_saveexec_b64 s[44:45], vcc
    s_cbranch_execz Lp_end
    v_lshlrev_b32 v14, 2, v0
    """)
    for g in range(4):
        a(f"ds_read2st64_b32 v[{16+2*g}:{17+2*g}], v14 offset0:{2*g} offset1:{2*g+1}")
    a(f"""
    v_lshrrev_b32 v5, 4, v0
    s_lshl_b32 s3, s41, 2
    v_add_u32 v5, s3, v5                    ; sub
    v_lshlrev_b32 v5, 5, v5
    v_and_b32 v6, 15, v0
    v_add_u32 v5, v5, v6
    s_lshl_b32 s3, s40, 4
    v_add_u32 v5, s3, v5
    v_lshlrev_b32 v5, 2, v5
    s_mov_b32 s49, {hex(CS)}
    s_waitcnt lgkmcnt(0)
    v_pk_add_f32 v[16:17], v[16:17], v[18:19]
    v_pk_add_f32 v[20:21], v[20:21], v[22:23]
    v_pk_add_f32 v[16:17], v[16:17], v[20:21]
    v_add_f32 v16, v16, v17
    buffer_store_dword v16, v5, s[20:23], s49 offen
    Lp_end:
    s_endpgm
    """)


C_CH = 12928
C_K0 = 4608
C_K1 = C_K0 + 1041 * 4
C_RED = 2 * C_CH
C_LDS = C_RED + 16384


class LgkmTracker:
    def __init__(self, a, cnt="lgkmcnt", maxc=15):
        self.a, self.n, self.done, self.tag, self.cnt, self.maxc = a, 0, 0, {}, cnt, maxc

    def issue(self, text, tag=None):
        self.a(text)
        self.n += 1
        if tag is not None:
            self.tag[tag] = self.n

    def wait(self, *tags):
        k = max(self.tag[t] for t in tags)
        if k > self.done:
            c = min(self.n - k, self.maxc)
            self.a(f"s_waitcnt {self.cnt}({c})")
            self.done = self.n - c

    def outstanding(self):
        return self.n - self.done


def gen_conv(a):
    header(a, "conv_kernel")
    a(f"""
    s_cmp_ge_u32 s2, 224
    s_cbranch_scc1 Lc_end
    s_load_dwordx4 s[4:7], s[0:1], 32
    s_load_dwordx2 s[18:19], s[0:1], 96
    s_and_b32 s3, s2, 7
    s_mul_i32 s3, s3, 56
    s_lshr_b32 s8, s2, 3
    s_lshl_b32 s8, s8, 1
    s_add_u32 s8, s8, s3                    ; d0
    v_and_b32 v1, 63, v0
    v_lshrrev_b32 v2, 6, v0                 ; w
    v_and_b32 v3, 15, v0                    ; n / i
    v_lshrrev_b32 v4, 4, v1                 ; q
    v_lshlrev_b32 v5, 4, v0                 ; tid*16
    v_subrev_u32 v6, 4, v5                  ; tid*16-4
    v_readfirstlane_b32 s9, v2
    s_lshl_b32 s10, s8, 12                  ; d0*4096
    s_lshl_b32 s11, s8, 1
    s_waitcnt lgkmcnt(0)
    s_add_u32 s6, s6, s11
    s_addc_u32 s7, s7, 0
    s_load_dword s12, s[6:7], 0             ; D[d0], D[d0+1]
    s_add_u32 s24, s4, s10
    s_addc_u32 s25, s5, 0
    s_mov_b32 s26, 4096
    s_mov_b32 s27, 0x20000
    s_add_u32 s28, s24, 4096
    s_addc_u32 s29, s25, 0
    s_mov_b32 s30, 4096
    s_mov_b32 s31, 0x20000
    """)
    srd(a, 20, 18, WS_SIZE)
    a(f"""
    s_add_u32 s13, s10, {hex(KVT)}
    s_add_u32 s14, s10, {hex(KVT+4096)}
    buffer_load_dwordx4 v[80:83], v5, s[20:23], s13 offen
    buffer_load_dwordx4 v[84:87], v5, s[20:23], s14 offen
    buffer_load_dwordx4 v[88:91], v5, s[24:27], 0 offen
    buffer_load_dword v96, v6, s[24:27], 0 offen
    buffer_load_dwordx4 v[92:95], v5, s[28:31], 0 offen
    buffer_load_dword v97, v6, s[28:31], 0 offen
    s_and_b32 s15, s9, 1                    ; parity
    s_lshr_b32 s16, s9, 1                   ; ch
    v_lshlrev_b32 v7, 4, v3
    v_lshl_add_u32 v7, v4, 2, v7
    s_lshl_b32 s17, s15, 10
    v_add_u32 v7, s17, v7                   ; sb
    v_lshlrev_b32 v8, 1, v7                 ; 2*sb
    v_lshlrev_b32 v9, 2, v7                 ; 4*sb
    s_lshl_b32 s32, s16, 12
    s_add_u32 s32, s32, s10                 ; d*4096
    s_add_u32 s33, s32, {hex(XT)}
    s_add_u32 s34, s32, {hex(HT)}
    s_mov_b32 s35, {hex(ST1)}
    s_mov_b32 s36, {hex(ST1+8192)}
    """)
    for t in range(4):
        a(f"buffer_load_dwordx2 v[{40+2*t}:{41+2*t}], v8, s[20:23], s33 offen offset:{512*t}")
    for t in range(4):
        a(f"buffer_load_dwordx4 v[{48+4*t}:{51+4*t}], v9, s[20:23], s35 offen offset:{1024*t}")
        a(f"buffer_load_dwordx4 v[{64+4*t}:{67+4*t}], v9, s[20:23], s36 offen offset:{1024*t}")
    a(f"""
    v_mov_b32 v100, 0
    v_mov_b32 v101, 0
    v_mov_b32 v102, 0
    v_mov_b32 v103, 0
    v_add_u32 v10, 4096, v5
    v_add_u32 v11, {C_K1-4-34*16}, v5
    v_cmp_gt_u32 vcc, 34, v0
    v_cndmask_b32 v10, v11, v10, vcc
    v_cmp_gt_u32 vcc, 36, v0
    s_and_saveexec_b64 s[38:39], vcc
    s_cbranch_execz Lc_nozero
    ds_write_b128 v10, v[100:103]
    ds_write_b128 v10, v[100:103] offset:{C_CH}
    Lc_nozero:
    s_mov_b64 exec, s[38:39]
    s_mul_i32 s37, s16, {C_CH}
    s_lshl_b32 s17, s15, 6
    s_add_u32 s17, s17, s37
    s_add_u32 s40, s17, 480
    v_lshlrev_b32 v12, 5, v3
    v_sub_u32 v12, s40, v12
    v_lshl_add_u32 v12, v4, 4, v12          ; vB
    v_add_u32 v13, 1, v3
    v_and_b32 v14, 1, v13
    v_lshrrev_b32 v13, 1, v13
    v_lshl_add_u32 v13, v4, 2, v13
    v_mul_u32_u24 v14, {C_K1-C_K0}, v14
    v_lshl_add_u32 v13, v13, 2, v14
    s_add_u32 s40, s17, {C_K0}
    v_add_u32 v13, s40, v13                 ; vA0
    v_add_u32 v14, 1024, v13
    v_add_u32 v15, 2048, v13
    v_add_u32 v16, 3072, v13
    s_add_u32 s40, s37, {4088-1536}
    v_sub_u32 v17, s40, v8
    s_lshl_b32 s40, s9, 12
    s_add_u32 s40, s40, {C_RED}
    v_lshl_add_u32 v18, v1, 4, s40
    s_xor_b32 s41, s9, 1
    s_lshl_b32 s41, s41, 12
    s_add_u32 s41, s41, {C_RED}
    v_lshl_add_u32 v19, v1, 4, s41
    s_waitcnt vmcnt(16)
    ds_write_b128 v5, v[80:83]
    ds_write_b128 v5, v[84:87] offset:{C_CH}
    s_waitcnt vmcnt(14)
    ds_write_b128 v5, v[88:91] offset:{C_K0+32}
    v_alignbit_b32 v100, v88, v96, 16
    v_alignbit_b32 v101, v89, v88, 16
    v_alignbit_b32 v102, v90, v89, 16
    v_alignbit_b32 v103, v91, v90, 16
    ds_write_b128 v5, v[100:103] offset:{C_K1+28}
    s_waitcnt vmcnt(12)
    ds_write_b128 v5, v[92:95] offset:{C_CH+C_K0+32}
    v_alignbit_b32 v104, v92, v97, 16
    v_alignbit_b32 v105, v93, v92, 16
    v_alignbit_b32 v106, v94, v93, 16
    v_alignbit_b32 v107, v95, v94, 16
    ds_write_b128 v5, v[104:107] offset:{C_CH+C_K1+28}
    s_waitcnt lgkmcnt(0)
    s_barrier
    """)
    T = LgkmTracker(a)
    Breg = lambda gg: 128 + 4 * (gg + 3)
    Areg = lambda jj: 80 + 4 * (jj & 3)
    acc = lambda t: 96 + 4 * t
    loads = []
    mf = []
    first_of = {}
    for jj in range(32):
        first_of[jj] = len(mf)
        for t in range(jj // 4, 8):
            mf.append((jj, t))
    seenB = set()
    for jj in range(32):
        base = 13 + jj // 8
        o = 32 * (jj % 8)
        r = Areg(jj)
        earliest = first_of[jj - 3] if jj >= 4 else 0
        loads.append((("A", jj, 0), f"ds_read2_b32 v[{r}:{r+1}], v{base} offset0:{o} offset1:{o+1}", earliest))
        loads.append((("A", jj, 1), f"ds_read2_b32 v[{r+2}:{r+3}], v{base} offset0:{o+2} offset1:{o+3}", earliest))
        for t in range(jj // 4, 8):
            gg = 4 * t - jj
            if gg not in seenB:
                seenB.add(gg)
                r = Breg(gg)
                loads.append((("B", gg), f"ds_read_b128 v[{r}:{r+3}], v12 offset:{128*(28-gg)}", 0))
    li = 0
    started = set()
    for mi, (jj, t) in enumerate(mf):
        gg = 4 * t - jj
        tags = [("A", jj, 0), ("A", jj, 1), ("B", gg)]
        while li < len(loads) and (any(tg not in T.tag for tg in tags) or
                                   (T.outstanding() < 12 and loads[li][2] <= mi)):
            assert loads[li][2] <= mi
            T.issue(loads[li][1], loads[li][0])
            li += 1
        T.wait(*tags)
        c = f"v[{acc(t)}:{acc(t)+3}]" if t in started else "0"
        started.add(t)
        a(f"v_mfma_f32_16x16x32_bf16 v[{acc(t)}:{acc(t)+3}], v[{Areg(jj)}:{Areg(jj)+3}], v[{Breg(gg)}:{Breg(gg)+3}], {c}")
    for tt in range(4):
        a(f"ds_read_b64 v[{20+2*tt}:{21+2*tt}], v17 offset:{1536-512*tt}")
    a("s_cmp_eq_u32 s15, 1")
    a("s_cbranch_scc1 Lc_par1")
    for par in range(2):
        if par == 1:
            a("Lc_par1:")
            a("s_nop 7")
        send = 4 * (1 - par)
        keep = 4 * par
        for tt in range(4):
            a(f"ds_write_b128 v18, v[{acc(send+tt)}:{acc(send+tt)+3}] offset:{1024*tt}")
        if par == 1:
            for i in range(16):
                a(f"v_mov_b32 v{acc(0)+i}, v{acc(4)+i}")
        else:
            a("s_branch Lc_join")
    a("Lc_join:")
    a(f"""
    s_lshr_b32 s13, s12, 16
    s_cmp_eq_u32 s16, 0
    s_cselect_b32 s12, s12, s13
    s_lshl_b32 s12, s12, 16                 ; D as f32
    s_waitcnt lgkmcnt(0)
    s_barrier
    """)
    for tt in range(4):
        a(f"ds_read_b128 v[{128+4*tt}:{131+4*tt}], v19 offset:{1024*tt}")
    a("s_waitcnt vmcnt(0)")
    for tt in range(4):
        u = 144 + 4 * tt
        a(f"v_and_b32 v{u+0}, 0xffff0000, v{21+2*tt}")
        a(f"v_lshlrev_b32 v{u+1}, 16, v{21+2*tt}")
        a(f"v_and_b32 v{u+2}, 0xffff0000, v{20+2*tt}")
        a(f"v_lshlrev_b32 v{u+3}, 16, v{20+2*tt}")
        x = 160 + 4 * tt
        a(f"v_lshlrev_b32 v{x+0}, 16, v{40+2*tt}")
        a(f"v_and_b32 v{x+1}, 0xffff0000, v{40+2*tt}")
        a(f"v_lshlrev_b32 v{x+2}, 16, v{41+2*tt}")
        a(f"v_and_b32 v{x+3}, 0xffff0000, v{41+2*tt}")
    for i in range(16):
        a(f"v_fmac_f32 v{96+i}, s12, v{144+i}")
    for i in range(0, 16, 2):
        a(f"v_pk_add_f32 v[{48+i}:{49+i}], v[{160+i}:{161+i}], v[{48+i}:{49+i}] neg_lo:[0,1] neg_hi:[0,1]")
    for i in range(0, 16, 2):
        a(f"v_pk_mul_f32 v[{48+i}:{49+i}], v[{48+i}:{49+i}], v[{64+i}:{65+i}]")
    a("s_waitcnt lgkmcnt(0)")
    for i in range(0, 16, 2):
        a(f"v_pk_add_f32 v[{96+i}:{97+i}], v[{96+i}:{97+i}], v[{128+i}:{129+i}]")
    for i in range(0, 16, 2):
        a(f"v_pk_fma_f32 v[{96+i}:{97+i}], v[{96+i}:{97+i}], v[{48+i}:{49+i}], v[{160+i}:{161+i}]")
    for tt in range(4):
        a(f"v_cvt_pk_bf16_f32 v{20+2*tt}, v{96+4*tt}, v{97+4*tt}")
        a(f"v_cvt_pk_bf16_f32 v{21+2*tt}, v{98+4*tt}, v{99+4*tt}")
        a(f"buffer_store_dwordx2 v[{20+2*tt}:{21+2*tt}], v8, s[20:23], s34 offen offset:{512*tt}")
    a("Lc_end:")
    a("s_endpgm")


G1_ST = 114688
G1_LDS = G1_ST + 2048


def gen_gemm1(a):
    header(a, "gemm1_kernel")
    a(f"""
    s_cmp_ge_u32 s2, 224
    s_cbranch_scc1 Lg1_end
    s_load_dwordx2 s[18:19], s[0:1], 96
    s_and_b32 s3, s2, 7
    s_lshr_b32 s4, s2, 3                    ; j
    s_cmp_ge_u32 s4, 14
    s_cselect_b32 s5, 1, 0
    s_mul_i32 s6, s5, 14
    s_sub_u32 s6, s4, s6                    ; nc
    s_lshl_b32 s3, s3, 1
    s_add_u32 s5, s5, s3                    ; mt
    v_and_b32 v1, 63, v0
    v_lshrrev_b32 v2, 6, v0
    v_readfirstlane_b32 s7, v2              ; w
    v_lshrrev_b32 v3, 4, v1                 ; r / gq
    v_and_b32 v4, 15, v1
    v_lshlrev_b32 v5, 2, v3
    v_xor_b32 v5, v5, v4
    v_lshlrev_b32 v5, 4, v5
    v_lshl_add_u32 v5, v3, 12, v5
    v_lshl_add_u32 v5, v2, 14, v5
    v_lshlrev_b32 v6, 4, v1                 ; lane*16
    s_lshl_b32 s8, s6, 3
    s_add_u32 s8, s8, s7                    ; sub
    s_lshl_b32 s9, s5, 8
    s_add_u32 s9, s9, {hex(HT)}
    s_mul_i32 s10, s8, 28672
    s_add_u32 s10, s10, {hex(WGU)}
    s_lshl_b32 s11, s7, 10                  ; m0
    s_lshl_b32 s12, s8, 7
    s_add_u32 s12, s12, {hex(CS)}
    v_lshrrev_b32 v7, 5, v1                 ; hh
    v_lshlrev_b32 v8, 5, v7
    s_waitcnt lgkmcnt(0)
    """)
    srd(a, 20, 18, WS_SIZE)
    for i in range(14):
        a(f"s_mov_b32 m0, s11")
        a(f"s_add_u32 s11, s11, 8192")
        a(f"buffer_load_dwordx4 v5, s[20:23], s9 offen lds")
        a(f"s_add_u32 s9, s9, 131072")
        for ks in (2 * i, 2 * i + 1):
            a(f"buffer_load_dwordx4 a[{4*ks}:{4*ks+3}], v6, s[20:23], s10 offen offset:{1024*(ks&3)}")
            if ks & 3 == 3:
                a("s_add_u32 s10, s10, 4096")
    a(f"""
    buffer_load_dwordx4 v[16:19], v8, s[20:23], s12 offen
    buffer_load_dwordx4 v[20:23], v8, s[20:23], s12 offen offset:16
    buffer_load_dwordx4 v[24:27], v8, s[20:23], s12 offen offset:64
    buffer_load_dwordx4 v[28:31], v8, s[20:23], s12 offen offset:80
    v_lshrrev_b32 v9, 2, v4                 ; r
    v_lshl_add_u32 v10, v7, 3, v9
    v_lshlrev_b32 v10, 8, v10
    v_and_b32 v11, 1, v3
    v_lshl_add_u32 v10, v11, 5, v10
    v_and_b32 v11, 3, v1
    v_lshl_add_u32 v10, v11, 3, v10
    s_and_b32 s13, s7, 3                    ; rt
    s_lshl_b32 s14, s5, 2                   ; 4*mt
    v_and_b32 v11, 31, v1
    v_lshlrev_b32 v11, 2, v11
    v_add_u32 v11, {G1_ST}, v11
    v_mov_b32 v14, 0
    v_mov_b32 v15, 0
    s_mov_b32 s15, 0x3f803f80
    """)

    def addr_setup():
        a("""
        v_xor_b32 v12, s13, v9
        v_lshl_add_u32 v12, v12, 6, v10
        v_add_u32 v13, 0x10000, v12
        """)

    NB = 6
    H = lambda ks: 64 + 4 * (ks % NB)

    def kloop(stat):
        T = LgkmTracker(a)
        def issue(ks):
            base = 12 if ks < 16 else 13
            o = 4096 * (ks % 16)
            T.issue(f"ds_read_b64_tr_b16 v[{H(ks)}:{H(ks)+1}], v{base} offset:{o}", (ks, 0))
            T.issue(f"ds_read_b64_tr_b16 v[{H(ks)+2}:{H(ks)+3}], v{base} offset:{o+1024}", (ks, 1))
        for ks in range(NB - 1):
            issue(ks)
        for ks in range(28):
            if ks + NB - 1 < 28:
                issue(ks + NB - 1)
            T.wait((ks, 1))
            c = "v[32:47]" if ks else "0"
            a(f"v_mfma_f32_32x32x16_bf16 v[32:47], a[{4*ks}:{4*ks+3}], v[{H(ks)}:{H(ks)+3}], {c}")
            if stat is not None:
                for e in range(4):
                    s0 = "s15" if stat == 0 else f"v{H(ks)+e}"
                    a(f"v_dot2c_f32_bf16 v{14+(e&1)}, {s0}, v{H(ks)+e}")

    addr_setup()
    a("s_waitcnt vmcnt(0)")
    a("s_barrier")
    a("s_cmp_ge_u32 s7, 4")
    a("s_cbranch_scc1 Lg1_sq")
    kloop(0)
    a("s_branch Lg1_st")
    a("Lg1_sq:")
    kloop(1)
    a("Lg1_st:")
    a(f"""
    s_nop 2
    v_add_f32 v14, v14, v15
    s_lshr_b32 s16, s7, 2                   ; kind
    s_lshl_b32 s16, s16, 10
    s_lshl_b32 s17, s13, 7
    s_add_u32 s16, s16, s17
    v_lshl_add_u32 v15, v7, 9, v11
    v_add_u32 v15, s16, v15
    ds_write_b32 v15, v14
    s_waitcnt lgkmcnt(0)
    s_barrier
    s_mov_b32 s24, 0
    s_branch Lg1_epi
    Lg1_loop:
    """)
    addr_setup()
    kloop(None)
    a("Lg1_epi:")
    c1 = -2.0 * math.sqrt(2.0 / math.pi) * math.log2(math.e)
    c2 = c1 * 0.044715
    a(f"""
    s_lshl_b32 s17, s13, 7
    v_add_u32 v15, s17, v11
    ds_read2st64_b32 v[48:49], v15 offset0:0 offset1:2
    ds_read2st64_b32 v[50:51], v15 offset0:4 offset1:6
    s_add_u32 s25, s14, s13
    s_mul_i32 s25, s25, 112
    s_add_u32 s25, s25, s8
    s_lshl_b32 s25, s25, 10
    s_add_u32 s25, s25, {hex(AF)}
    s_waitcnt lgkmcnt(0)
    v_add_f32 v48, v48, v49
    v_add_f32 v50, v50, v51
    v_mul_f32 v48, {fbits(1.0/448)}, v48      ; mean
    v_mul_f32 v50, {fbits(1.0/448)}, v50      ; E[h^2]
    v_fma_f32 v50, -v48, v48, v50           ; var
    v_max_f32 v50, 0, v50
    """)
    round_bf16(a, 48)
    round_bf16(a, 50)
    a(f"v_add_f32 v50, {fbits(1e-5)}, v50")
    round_bf16(a, 50)
    a("v_sqrt_f32 v50, v50")
    round_bf16(a, 50)
    a(f"""
    v_rcp_f32 v49, v50                      ; r
    v_mul_f32 v50, v50, v50                 ; sd^2
    v_mul_f32 v51, v49, v49
    v_mul_f32 v51, v51, v49
    v_mul_f32 v51, {fbits(c2)}, v51          ; C2
    v_mul_f32 v49, {fbits(c1)}, v49          ; C1
    """)
    for i in range(16):
        a(f"v_fma_f32 v{32+i}, -v48, v{16+i}, v{32+i}")
    for i in range(8):
        a(f"v_mul_f32 v{52+i}, v{32+i}, v{32+i}")
    for i in range(8):
        a(f"v_fma_f32 v{52+i}, v{52+i}, v51, v49")
    for i in range(8):
        a(f"v_mul_f32 v{52+i}, v{52+i}, v{32+i}")
    for i in range(8):
        a(f"v_exp_f32 v{52+i}, v{52+i}")
        a(f"v_mul_f32 v{40+i}, v{32+i}, v{40+i}")
    for i in range(8):
        a(f"v_fma_f32 v{52+i}, v{52+i}, v50, v50")
    for i in range(8):
        a(f"v_rcp_f32 v{52+i}, v{52+i}")
    for i in range(8):
        a(f"v_mul_f32 v{52+i}, v{52+i}, v{40+i}")
    for i in range(4):
        a(f"v_cvt_pk_bf16_f32 v{60+i}, v{52+2*i}, v{53+2*i}")
    a(f"""
    buffer_store_dwordx4 v[60:63], v6, s[20:23], s25 offen
    s_add_u32 s13, s13, 1
    s_and_b32 s13, s13, 3
    s_add_u32 s24, s24, 1
    s_cmp_lt_u32 s24, 4
    s_cbranch_scc1 Lg1_loop
    Lg1_end:
    s_endpgm
    """)


G2_H = 49152
G2_LDS = G2_H + 8192


def gen_gemm2(a):
    header(a, "gemm2_kernel")
    a(f"""
    s_cmp_ge_u32 s2, 224
    s_cbranch_scc1 Lg2_end
    s_load_dwordx2 s[16:17], s[0:1], 80
    s_load_dwordx2 s[18:19], s[0:1], 96
    s_and_b32 s3, s2, 7
    s_lshr_b32 s4, s2, 3                    ; j
    s_mul_i32 s5, s4, 37
    s_lshr_b32 s5, s5, 8                    ; j/7
    s_mul_i32 s6, s5, 7
    s_sub_u32 s6, s4, s6                    ; nt64
    s_lshl_b32 s3, s3, 2
    s_add_u32 s5, s5, s3                    ; mt64
    v_and_b32 v1, 63, v0
    v_lshrrev_b32 v2, 6, v0
    v_readfirstlane_b32 s7, v2              ; w
    v_lshlrev_b32 v6, 4, v1
    s_and_b32 s8, s7, 1                     ; wn
    s_lshr_b32 s9, s7, 1                    ; wm
    s_mul_i32 s10, s7, 28
    s_lshl_b32 s11, s5, 1
    s_add_u32 s12, s11, s9
    s_xor_b32 s13, s12, 1
    s_mul_i32 s12, s12, 112
    s_mul_i32 s13, s13, 112
    s_add_u32 s12, s12, s10
    s_add_u32 s13, s13, s10
    s_lshl_b32 s12, s12, 10
    s_lshl_b32 s13, s13, 10
    s_add_u32 s12, s12, {hex(AF)}
    s_add_u32 s13, s13, {hex(AF)}
    s_lshl_b32 s11, s6, 1
    s_add_u32 s14, s11, s8
    s_xor_b32 s15, s14, 1
    s_mul_i32 s14, s14, 112
    s_mul_i32 s15, s15, 112
    s_add_u32 s14, s14, s10
    s_add_u32 s15, s15, s10
    s_lshl_b32 s14, s14, 10
    s_lshl_b32 s15, s15, 10
    s_add_u32 s14, s14, {hex(WD)}
    s_add_u32 s15, s15, {hex(WD)}
    v_lshrrev_b32 v3, 3, v1
    v_and_b32 v4, 7, v1
    v_lshlrev_b32 v3, 12, v3
    v_lshl_add_u32 v3, v4, 4, v3
    s_lshl_b32 s28, s6, 2
    s_add_u32 s28, s28, s7
    s_lshl_b32 s28, s28, 16
    s_lshl_b32 s29, s5, 7
    s_add_u32 s28, s28, s29
    s_add_u32 s28, s28, {hex(HT)}
    s_add_u32 s29, s28, 32768
    s_lshl_b32 s30, s7, 11
    s_add_u32 s30, s30, {G2_H}
    s_waitcnt lgkmcnt(0)
    """)
    srd(a, 20, 18, WS_SIZE)
    srd(a, 24, 16, IN_BYTES)
    T = LgkmTracker(a, "vmcnt", 63)
    NR = 14
    R = lambda ks, i: 16 * (ks % NR) + 4 * i

    def issue(ks):
        for i in (2, 0, 3, 1):
            T.issue(f"buffer_load_dwordx4 a[{R(ks,i)}:{R(ks,i)+3}], v6, s[20:23], s{12+i} offen offset:{1024*(ks&3)}", (ks, i))
        if ks & 3 == 3:
            for i in range(4):
                a(f"s_add_u32 s{12+i}, s{12+i}, 4096")
    for ks in range(NR):
        issue(ks)
    a("s_mov_b32 m0, s30")
    a("s_add_u32 s30, s30, 1024")
    T.issue("buffer_load_dwordx4 v3, s[20:23], s28 offen lds", "h0")
    a("s_mov_b32 m0, s30")
    a("s_nop 0")
    T.issue("buffer_load_dwordx4 v3, s[20:23], s29 offen lds", "h1")
    a(f"""
    v_and_b32 v7, 31, v1
    v_lshrrev_b32 v8, 5, v1                 ; hh
    s_lshl_b32 s31, s5, 1
    s_add_u32 s31, s31, s9
    s_lshl_b32 s31, s31, 5
    v_add_u32 v7, s31, v7
    v_mul_u32_u24 v7, 896, v7
    s_lshl_b32 s31, s6, 1
    s_add_u32 s31, s31, s8
    s_lshl_b32 s31, s31, 6
    v_add_u32 v7, s31, v7
    v_lshl_add_u32 v7, v8, 5, v7
    v_bfe_u32 v9, v1, 2, 2                  ; r
    v_lshl_add_u32 v9, v8, 4, v9
    v_lshlrev_b32 v9, 7, v9
    v_bfe_u32 v10, v1, 4, 1
    v_lshl_add_u32 v9, v10, 5, v9
    v_and_b32 v10, 3, v1
    v_lshl_add_u32 v9, v10, 3, v9
    s_lshl_b32 s31, s8, 12
    s_lshl_b32 s32, s9, 6
    s_add_u32 s31, s31, s32
    s_add_u32 s31, s31, {G2_H}
    v_add_u32 v9, s31, v9
    """)
    for idx in range(3):
        a(f"s_xor_b32 s31, s7, {idx+1}")
        a(f"s_mul_i32 s31, s31, 12288")
        a(f"s_add_u32 s31, s31, {4096*idx}")
        a(f"v_add_u32 v{11+idx}, s31, v6")
    a("s_mul_i32 s31, s7, 12288")
    a("v_add_u32 v14, s31, v6")
    acc = lambda n, m: 64 + 16 * (n + 2 * m)
    for ks in range(28):
        for (n, m) in ((0, 0), (1, 0), (0, 1), (1, 1)):
            T.wait((ks, 2 + n), (ks, m))
            c = f"v[{acc(n,m)}:{acc(n,m)+15}]"
            a(f"v_mfma_f32_32x32x16_bf16 {c}, a[{R(ks,2+n)}:{R(ks,2+n)+3}], a[{R(ks,m)}:{R(ks,m)+3}], {c if ks else '0'}")
        if ks + NR < 28:
            issue(ks + NR)
    for idx in range(3):
        b = 64 + 16 * (idx + 1)
        for k in range(4):
            a(f"ds_write_b128 v{11+idx}, v[{b+4*k}:{b+4*k+3}] offset:{1024*k}")
    a("s_waitcnt vmcnt(0) lgkmcnt(0)")
    a("s_barrier")
    L = LgkmTracker(a)
    for z in range(4):
        L.issue(f"ds_read_b64_tr_b16 v[{16+2*z}:{17+2*z}], v9 offset:{512*z}", "h")
    def rd(idx):
        b = 64 + 16 * (idx + 1)
        for k in range(4):
            L.issue(f"ds_read_b128 v[{b+4*k}:{b+4*k+3}], v14 offset:{4096*idx+1024*k}", idx)
    rd(0)
    rd(1)
    L.wait("h")
    rd(2)
    for i in range(8):
        a(f"v_lshlrev_b32 v{32+2*i}, 16, v{16+i}")
        a(f"v_and_b32 v{33+2*i}, 0xffff0000, v{16+i}")
    for i in range(0, 16, 2):
        a(f"v_pk_add_f32 v[{64+i}:{65+i}], v[{64+i}:{65+i}], v[{32+i}:{33+i}]")
    for idx in range(3):
        L.wait(idx)
        b = 64 + 16 * (idx + 1)
        for i in range(0, 16, 2):
            a(f"v_pk_add_f32 v[{64+i}:{65+i}], v[{64+i}:{65+i}], v[{b+i}:{b+i+1}]")
    for i in range(8):
        a(f"v_cvt_pk_bf16_f32 v{16+i}, v{64+2*i}, v{65+2*i}")
    a("buffer_store_dwordx4 v[16:19], v7, s[24:27], 0 offen")
    a("buffer_store_dwordx4 v[20:23], v7, s[24:27], 0 offen offset:16")
    a("Lg2_end:")
    a("s_endpgm")


def main():
    out = sys.argv[1] if len(sys.argv) > 1 else f"cdna_kernels/{NAME}.s"
    extra_empty = int(sys.argv[2]) if len(sys.argv) > 2 else 0
    ref = open(f"cdna_kernels/{NAME}.s.ref").read().split("\n")
    head = [l for l in ref if l.startswith(";") and "@launch" not in l and "Override launch" not in l
            and "grid=ceil" not in l][:14]
    lines = head + [
        f"; @launch kernel=prep_kernel grid=({P_END},1,1) block=(256,1,1) lds=2048",
        f"; @launch kernel=conv_kernel grid=(224,1,1) block=(256,1,1) lds={C_LDS}",
        f"; @launch kernel=gemm1_kernel grid=(224,1,1) block=(512,1,1) lds={G1_LDS}",
        f"; @launch kernel=gemm2_kernel grid=(224,1,1) block=(256,1,1) lds={G2_LDS}",
    ]
    for _ in range(extra_empty):
        lines.append("; @launch kernel=empty_kernel grid=(224,1,1) block=(256,1,1) lds=0")
    a = Asm()
    gen_prep(a)
    gen_conv(a)
    gen_gemm1(a)
    gen_gemm2(a)
    if extra_empty:
        header(a, "empty_kernel")
        a("s_endpgm")
    body, npad = a.finalize()
    text = "\n".join(lines) + '\n.amdgcn_target "amdgcn-amd-amdhsa--gfx950"\n.text\n' + body
    text += '.section .rodata,"a"\n'
    text += desc("prep_kernel", 128, 128)
    text += desc("conv_kernel", 256, 256)
    text += desc("gemm1_kernel", 240, 128)
    text += desc("gemm2_kernel", 352, 128)
    if extra_empty:
        text += desc("empty_kernel", 8, 8)
    open(out, "w").write(text)
    print("wrote", out, "auto nops:", npad, "bytes:", len(text))


if __name__ == "__main__":
    main()
```
